```python
import torch

def _softmax(x, axis=-1):
    return torch.softmax(x, dim=axis)

def _gelu(x):
    return torch.nn.functional.gelu(x, approximate='tanh')

def _silu(x):
    return torch.nn.functional.silu(x)

def _sigmoid(x):
    return torch.sigmoid(x)

def _layernorm(x, axis=-1, eps=1e-05):
    m = x.mean(dim=axis, keepdim=True)
    v = x.var(dim=axis, keepdim=True, unbiased=False)
    return (x - m) / torch.sqrt(v + eps)

def _scatter_add(tgt, idx, src, axis=0):
    return tgt.clone().index_add_(axis, idx, src)

def _segment_sum(src, seg, n):
    out = torch.zeros((n,) + src.shape[1:], dtype=src.dtype)
    return out.index_add_(0, seg, src)

def _pad(x, pw):
    flat = tuple((v for pair in reversed(pw) for v in pair))
    return torch.nn.functional.pad(x, flat)
kernel_name = 'adaLN_cond__grouped_kv_mqa__glu_gated_reglu__prompt'

def setup_inputs():

    _w = lambda a: (lambda t: t.to(torch.bfloat16) if t.is_floating_point() else t)(torch.as_tensor(a))

    def _A_setup():
        B, S, D, H = (1, 2048, 1024, 32)
        Dh = D // H
        return {'x': _w((lambda *s: torch.randn(*s, dtype=torch.bfloat16) * 0.05)(B, S, D)), 'wq': _w((lambda *s: torch.randn(*s, dtype=torch.bfloat16) * 0.05)(D, H * Dh)), 'wk': _w((lambda *s: torch.randn(*s, dtype=torch.bfloat16) * 0.05)(D, Dh)), 'wv': _w((lambda *s: torch.randn(*s, dtype=torch.bfloat16) * 0.05)(D, Dh)), 'wo': _w((lambda *s: torch.randn(*s, dtype=torch.bfloat16) * 0.05)(H * Dh, D))}
    _A_in = _A_setup()

    def _B_setup():
        B, S, D, F = (1, 2048, 1024, 3584)
        return {'x': _w((lambda *s: torch.randn(*s, dtype=torch.bfloat16) * 0.05)(B, S, D)), 'W_gate': _w((lambda *s: torch.randn(*s, dtype=torch.bfloat16) * 0.8)(D, F) * (2.0 / D) ** 0.5), 'W_up': _w((lambda *s: torch.randn(*s, dtype=torch.bfloat16) * 0.8)(D, F) * (2.0 / D) ** 0.5), 'W_down': _w((lambda *s: torch.randn(*s, dtype=torch.bfloat16) * 0.8)(F, D) * (1.0 / F) ** 0.5)}
    _B_in = _B_setup()
    return {'A_x': _A_in['x'], 'A_wq': _A_in['wq'], 'A_wk': _A_in['wk'], 'A_wv': _A_in['wv'], 'A_wo': _A_in['wo'], 'B_x': _B_in['x'], 'B_W_gate': _B_in['W_gate'], 'B_W_up': _B_in['W_up'], 'B_W_down': _B_in['W_down'], 'c': _w((lambda *s: torch.randn(*s, dtype=torch.bfloat16) * 0.1)(1, 1024) * 8.0), 'w_mod': _w((lambda *s: torch.randn(*s, dtype=torch.bfloat16) * 0.1)(1024, 6 * 1024) * 1024 ** (-0.5) * 8.0)}

def reference(A_x, A_wq, A_wk, A_wv, A_wo, B_x, B_W_gate, B_W_up, B_W_down, c, w_mod):

    def _A_ref(x, wq, wk, wv, wo):
        B, S, D = x.shape
        H = 32
        Dh = D // H
        q = (lambda x, *d: x.permute(*d))((x @ wq).reshape(B, S, H, Dh), 0, 2, 1, 3)
        k = x @ wk
        v = x @ wv
        scores = torch.einsum('bhqd,bkd->bhqk', q, k) * Dh ** (-0.5)
        p = _softmax(scores, axis=-1)
        o = torch.einsum('bhqk,bkd->bhqd', p, v)
        return (lambda x, *d: x.permute(*d))(o, 0, 2, 1, 3).reshape(B, S, H * Dh) @ wo

    def _B_ref(x, W_gate, W_up, W_down):
        gate = torch.einsum('bsd,df->bsf', x, W_gate)
        up = torch.einsum('bsd,df->bsf', x, W_up)
        gate = gate * (lambda x, dt: x.to(dt))(gate > 0, gate.dtype)
        h = gate * up
        return torch.einsum('bsf,fd->bsd', h, W_down)
    x = A_x
    mod = (_silu(c) @ w_mod).reshape(c.shape[0], 6, 1, -1)
    sa, ca, ga, sb, cb, gb = (mod[:, 0].clone(), mod[:, 1].clone(), mod[:, 2].clone(), mod[:, 3].clone(), mod[:, 4].clone(), mod[:, 5].clone())
    h = _layernorm(x, axis=-1) * (1 + ca) + sa
    x = x + ga * _A_ref(h, A_wq, A_wk, A_wv, A_wo)
    h = _layernorm(x, axis=-1) * (1 + cb) + sb
    x = x + gb * _B_ref(h, B_W_gate, B_W_up, B_W_down)
    return x
```

```python
class Asm:
    def __init__(self):
        self.lines = []
    def __call__(self, s):
        if isinstance(s, (list, tuple)):
            for x in s: self(x)
        else:
            self.lines.append(s)
    def text(self):
        import re
        for l in self.lines:
            for ln in l.split("\n"):
                m = re.search(r"offset:(\d+)", ln)
                if m:
                    o = int(m.group(1))
                    if ln.strip().startswith("buffer_"): assert o < 4096, ln
                    elif ln.strip().startswith("ds_"): assert o < 65536, ln
                    elif ln.strip().startswith("global_"): assert o < 4096, ln
        return "\n".join(self.lines) + "\n"

def vr(i, n=1):
    return f"v{i}" if n == 1 else f"v[{i}:{i+n-1}]"
def sr(i, n=1):
    return f"s{i}" if n == 1 else f"s[{i}:{i+n-1}]"

def mfma16(d, a, b, c):
    cs = c if isinstance(c, str) else vr(c, 4)
    return f"v_mfma_f32_16x16x32_bf16 {vr(d,4)}, {vr(a,4)}, {vr(b,4)}, {cs}"
def mfma32(d, a, b, c):
    cs = c if isinstance(c, str) else vr(c, 16)
    return f"v_mfma_f32_32x32x16_bf16 {vr(d,16)}, {vr(a,4)}, {vr(b,4)}, {cs}"

def kernel_begin(A, name):
    A(".text")
    A(f".globl {name}")
    A(".p2align 8")
    A(f".type {name},@function")
    A(f"{name}:")

def kernel_end(A, name, nvgpr, nsgpr=102, karg=112):
    acc = (nvgpr + 3) // 4 * 4
    A(f""".section .rodata,"a"
.p2align 6
.amdhsa_kernel {name}
  .amdhsa_next_free_vgpr {nvgpr}
  .amdhsa_next_free_sgpr {nsgpr}
  .amdhsa_accum_offset {acc}
  .amdhsa_group_segment_fixed_size 0
  .amdhsa_kernarg_size {karg}
  .amdhsa_user_sgpr_count 2
  .amdhsa_user_sgpr_kernarg_segment_ptr 1
  .amdhsa_system_sgpr_workgroup_id_x 1
.end_amdhsa_kernel""")

def srd(A, d, base_lo, base_hi, nbytes):
    A(f"s_mov_b32 s{d}, {base_lo}")
    A(f"s_and_b32 s{d+1}, {base_hi}, 0xffff")
    A(f"s_mov_b32 s{d+2}, {nbytes}")
    A(f"s_mov_b32 s{d+3}, 0x00020000")

def interleave(main, fill, start=0, end=None):
    if end is None: end = len(main)
    n = end - start
    res = []
    k = 0
    for i, m in enumerate(main):
        res.append(m)
        if start <= i < end:
            hi = round((i - start + 1) * len(fill) / n)
            while k < hi:
                f = fill[k]; k += 1
                if isinstance(f, (list, tuple)): res.extend(f)
                else: res.append(f)
    while k < len(fill):
        f = fill[k]; k += 1
        if isinstance(f, (list, tuple)): res.extend(f)
        else: res.append(f)
    return res

KA = dict(x=0, wq=8, wk=16, wv=24, wo=32, bx=40, wg=48, wu=56, wd=64, c=72, wmod=80, out=88, dbg=96, ws=104)

MB = 1 << 20
WS = dict(
    MOD=0x0000000,
    KMAX=0x0010000,
    UW=0x0020000,
    STAT=0x0040000,
    KF=0x0100000,
    VF=0x0140000,
    XN=0x0400000,
    QF=0x0800000,
    OF=0x0C00000,
    X2=0x1000000,
    YF=0x1400000,
    HF=0x1800000,
    DBG=0x3000000,
)
```

```python
from asmlib import *

def gen_k1(A, name="k1_kernel", dbg=False):
    kernel_begin(A, name)
    A("s_cmp_ge_u32 s2, 256")
    A(f"s_cbranch_scc1 {name}_end")
    A(f"s_load_dwordx4 s[4:7], s[0:1], {KA['c']}")
    A(f"s_load_dwordx2 s[8:9], s[0:1], {KA['ws']}")
    A(f"s_load_dwordx2 s[10:11], s[0:1], {KA['x']}")
    A("s_cmp_ge_u32 s2, 192")
    A(f"s_cbranch_scc1 {name}_ln")
    A("s_lshr_b32 s3, s2, 4")
    A("s_lshl_b32 s3, s3, 3")
    A("s_and_b32 s12, s2, 7")
    A("s_add_u32 s3, s3, s12")
    A("s_lshl_b32 s3, s3, 1")
    A("s_bfe_u32 s12, s2, 0x10003")
    A("s_add_u32 s33, s3, s12")
    A("v_lshrrev_b32 v1, 2, v0")
    A("v_and_b32 v2, 3, v0")
    A("v_lshlrev_b32 v3, 5, v1")
    A("s_mov_b32 s3, 196608")
    A("v_mul_lo_u32 v4, v1, s3")
    A("v_lshl_add_u32 v4, v2, 4, v4")
    A("s_lshl_b32 s3, s33, 6")
    A("v_add_u32 v4, s3, v4")
    A("s_waitcnt lgkmcnt(0)")
    srd(A, 12, "s4", "s5", 2048)
    srd(A, 16, "s6", "s7", 1024 * 12288)
    srd(A, 24, "s8", "s9", 64 * MB)
    A("buffer_load_dwordx4 v[8:11], v3, s[12:15], 0 offen")
    A("buffer_load_dwordx4 v[12:15], v3, s[12:15], 0 offen offset:16")
    A("s_mov_b32 s3, 0")
    for p in range(16):
        A(f"buffer_load_dwordx4 {vr(64+4*p,4)}, v4, s[16:19], s3 offen")
        if p < 15: A("s_add_u32 s3, s3, 12288")
    A("s_waitcnt vmcnt(16)")
    A("s_mov_b32 s3, 0xbfb8aa3b")
    for d in range(8):
        A(f"v_lshlrev_b32 v{32+2*d}, 16, v{8+d}")
        A(f"v_and_b32 v{33+2*d}, 0xffff0000, v{8+d}")
    for e in range(16):
        A(f"v_mul_f32 v{48+e}, s3, v{32+e}")
    for e in range(16):
        A(f"v_exp_f32 v{48+e}, v{48+e}")
    for e in range(16):
        A(f"v_add_f32 v{48+e}, 1.0, v{48+e}")
    for e in range(16):
        A(f"v_rcp_f32 v{48+e}, v{48+e}")
    A("s_nop 0")
    for e in range(16):
        A(f"v_mul_f32 v{32+e}, v{32+e}, v{48+e}")
    for d in range(8):
        A(f"v_cvt_pk_bf16_f32 v{8+d}, v{32+2*d}, v{33+2*d}")
    for d in range(8):
        A(f"v_lshlrev_b32 v{32+2*d}, 16, v{8+d}")
        A(f"v_and_b32 v{33+2*d}, 0xffff0000, v{8+d}")
    for j in range(8): A(f"v_mov_b32 v{16+j}, 0")
    for p in range(16):
        A(f"s_waitcnt vmcnt({15-p})")
        for d in range(4):
            A(f"v_lshlrev_b32 v24, 16, v{64+4*p+d}")
            A(f"v_and_b32 v25, 0xffff0000, v{64+4*p+d}")
            A(f"v_fmac_f32 v{16+2*d}, v{32+p}, v24")
            A(f"v_fmac_f32 v{17+2*d}, v{32+p}, v25")
    A("v_lshlrev_b32 v5, 7, v1")
    A("v_lshl_add_u32 v5, v2, 5, v5")
    A("ds_write_b128 v5, v[16:19]")
    A("ds_write_b128 v5, v[20:23] offset:16")
    A("s_waitcnt lgkmcnt(0)")
    A("s_barrier")
    A("v_and_b32 v6, 31, v0")
    A("v_lshrrev_b32 v7, 5, v0")
    A("v_lshlrev_b32 v5, 10, v7")
    A("v_lshl_add_u32 v5, v6, 2, v5")
    for i in range(8): A(f"ds_read_b32 v{16+i}, v5 offset:{i*128}")
    A("s_waitcnt lgkmcnt(0)")
    for i in range(1, 8): A(f"v_add_f32 v16, v16, v{16+i}")
    A("v_lshlrev_b32 v5, 7, v7")
    A("v_lshl_add_u32 v5, v6, 2, v5")
    A("ds_write_b32 v5, v16 offset:8192")
    A("s_waitcnt lgkmcnt(0)")
    A("s_barrier")
    A("v_cmp_gt_u32 vcc, 32, v0")
    A("s_and_saveexec_b64 s[20:21], vcc")
    A(f"s_cbranch_execz {name}_end")
    A("v_lshlrev_b32 v5, 2, v0")
    for i in range(8): A(f"ds_read_b32 v{16+i}, v5 offset:{8192+i*128}")
    A("s_waitcnt lgkmcnt(0)")
    for i in range(1, 8): A(f"v_add_f32 v16, v16, v{16+i}")
    A("v_cvt_pk_bf16_f32 v16, v16, v16")
    A("v_lshlrev_b32 v16, 16, v16")
    A("s_lshr_b32 s3, s33, 5")
    A("s_cmp_eq_u32 s3, 1")
    A(f"s_cbranch_scc1 {name}_plus1")
    A("s_cmp_eq_u32 s3, 4")
    A(f"s_cbranch_scc0 {name}_st")
    A(f"{name}_plus1:")
    A("v_add_f32 v16, 1.0, v16")
    A("v_cvt_pk_bf16_f32 v16, v16, v16")
    A("v_lshlrev_b32 v16, 16, v16")
    A(f"{name}_st:")
    A("s_lshl_b32 s3, s33, 7")
    A(f"s_add_u32 s3, s3, {WS['MOD']}")
    A("buffer_store_dword v16, v5, s[24:27], s3 offen")
    A("s_endpgm")
    A(f"{name}_ln:")
    A("v_lshrrev_b32 v1, 6, v0")
    A("v_and_b32 v2, 63, v0")
    A("v_readfirstlane_b32 s32, v1")
    A("v_and_b32 v3, 15, v2")
    A("v_lshrrev_b32 v4, 4, v2")
    A("s_sub_u32 s33, s2, 192")
    A("s_lshl_b32 s34, s33, 1")
    A("s_lshr_b32 s3, s32, 1")
    A("s_add_u32 s34, s34, s3")
    A("s_and_b32 s35, s32, 1")
    A("v_lshlrev_b32 v5, 11, v3")
    A("v_lshl_add_u32 v5, v4, 4, v5")
    A("s_lshl_b32 s3, s34, 15")
    A("s_lshl_b32 s12, s35, 10")
    A("s_add_u32 s3, s3, s12")
    A("v_add_u32 v5, s3, v5")
    A("s_waitcnt lgkmcnt(0)")
    srd(A, 12, "s10", "s11", 4 * MB)
    srd(A, 24, "s8", "s9", 64 * MB)
    for s in range(16):
        A(f"buffer_load_dwordx4 {vr(64+4*s,4)}, v5, s[12:15], 0 offen offset:{64*s}")
    A("v_mov_b32 v6, 0")
    A("v_lshlrev_b32 v7, 2, v2")
    A("s_lshl_b32 s3, s33, 8")
    A(f"s_add_u32 s3, s3, {WS['STAT']}")
    A("s_cmp_eq_u32 s32, 0")
    A(f"s_cbranch_scc0 {name}_nz")
    A("buffer_store_dword v6, v7, s[24:27], s3 offen")
    A(f"{name}_nz:")
    for j in range(4): A(f"v_mov_b32 v{16+j}, 0")
    for s in range(16):
        A(f"s_waitcnt vmcnt({15-s + 1})" if False else f"s_waitcnt vmcnt({min(16-s, 16)-1+1})" if False else f"s_waitcnt vmcnt({15-s})")
        for d in range(4):
            A(f"v_lshlrev_b32 v24, 16, v{64+4*s+d}")
            A(f"v_and_b32 v25, 0xffff0000, v{64+4*s+d}")
            A("v_add_f32 v16, v16, v24")
            A("v_add_f32 v17, v17, v25")
            A("v_fmac_f32 v18, v24, v24")
            A("v_fmac_f32 v19, v25, v25")
    A("v_add_f32 v16, v16, v17")
    A("v_add_f32 v17, v18, v19")
    for perm in ("v_permlane16_swap_b32", "v_permlane32_swap_b32"):
        A("v_mov_b32 v18, v16"); A("v_mov_b32 v19, v17")
        A("s_nop 1")
        A(f"{perm} v16, v18"); A(f"{perm} v17, v19")
        A("s_nop 1")
        A("v_add_f32 v16, v16, v18"); A("v_add_f32 v17, v17, v19")
    A("v_lshlrev_b32 v6, 3, v3")
    A("s_lshl_b32 s3, s32, 7")
    A("v_add_u32 v7, s3, v6")
    A("s_xor_b32 s3, s3, 128")
    A("v_add_u32 v6, s3, v6")
    A("ds_write_b64 v7, v[16:17]")
    A("s_waitcnt lgkmcnt(0)")
    A("s_barrier")
    A("ds_read_b64 v[18:19], v6")
    A("s_waitcnt lgkmcnt(0)")
    A("v_add_f32 v16, v16, v18")
    A("v_add_f32 v17, v17, v19")
    A("s_mov_b32 s3, 0x3a800000")
    A("s_mov_b32 s12, 0x3727c5ac")
    A("v_mul_f32 v16, s3, v16")
    A("v_mul_f32 v17, s3, v17")
    A("v_fma_f32 v17, -v16, v16, v17")
    A("v_max_f32 v17, 0, v17")
    A("v_add_f32 v17, s12, v17")
    A("v_rsq_f32 v17, v17")
    A("s_nop 0")
    A("v_mul_f32 v16, v16, v17")
    A("v_sub_f32 v16, 0, v16")
    A("v_lshlrev_b32 v5, 4, v2")
    A("s_lshl_b32 s3, s34, 10")
    A("v_add_u32 v5, s3, v5")
    A("s_lshl_b32 s3, s35, 21")
    A(f"s_add_u32 s3, s3, {WS['XN']}")
    for s in range(16):
        for d in range(4):
            A(f"v_lshlrev_b32 v24, 16, v{64+4*s+d}")
            A(f"v_and_b32 v25, 0xffff0000, v{64+4*s+d}")
            A("v_fma_f32 v24, v24, v17, v16")
            A("v_fma_f32 v25, v25, v17, v16")
            A(f"v_cvt_pk_bf16_f32 v{64+4*s+d}, v24, v25")
        A(f"buffer_store_dwordx4 {vr(64+4*s,4)}, v5, s[24:27], s3 offen")
        if s < 15: A("s_add_u32 s3, s3, 131072")
    A(f"{name}_end:")
    A("s_endpgm")
    kernel_end(A, name, 128)
    return dict(name=name, grid=256, block=256, lds=9216)
```

```python
from asmlib import *

def gen_k3(A, name="k3_attn_kernel", dbg=False, force_fallback=False):
    Q = 8; CI = 16; S = [32, 48]; O = 64; L = 80; ONES = 84
    P = [88, 96]; KFR = [104, 112]; VFR = [120, 128]
    VK, VV, VD, VL = 136, 137, 138, 139
    MX = 140
    FLAG = 65536
    stamps = []
    def stamp(tag):
        if dbg:
            r = 60 + 2 * len(stamps); stamps.append(tag)
            A(f"s_memtime s[{r}:{r+1}]")
    kernel_begin(A, name)
    A("s_cmp_ge_u32 s2, 256")
    A(f"s_cbranch_scc1 {name}_end")
    A(f"s_load_dwordx2 s[8:9], s[0:1], {KA['ws']}")
    A(f"s_load_dwordx4 s[4:7], s[0:1], {KA['wg']}")
    stamp("start")
    if dbg: A("s_memrealtime s[96:97]")
    A("v_lshrrev_b32 v1, 6, v0")
    A(f"v_and_b32 v{VL}, 63, v0")
    A("v_readfirstlane_b32 s32, v1")
    A("s_lshr_b32 s33, s2, 3")
    A("s_and_b32 s34, s2, 7")
    A("s_lshl_b32 s34, s34, 3")
    A("s_add_u32 s34, s34, s32")
    A(f"v_lshlrev_b32 v{VK}, 4, v{VL}")
    A("s_lshl_b32 s3, s32, 10")
    A(f"v_add_u32 v{VD}, s3, v{VK}")
    A("s_lshl_b32 s40, s32, 10")
    A(f"v_lshrrev_b32 v2, 5, v{VL}")
    A(f"v_bfe_u32 v3, v{VL}, 2, 2")
    A("v_lshl_add_u32 v3, v2, 2, v3")
    A("v_lshlrev_b32 v3, 6, v3")
    A(f"v_bfe_u32 v4, v{VL}, 4, 1")
    A("v_lshl_add_u32 v3, v4, 5, v3")
    A(f"v_and_b32 v4, 3, v{VL}")
    A("v_lshl_add_u32 v3, v4, 3, v3")
    A(f"v_add_u32 v{VV}, 8192, v3")
    A(f"v_and_b32 v4, 3, v{VL}")
    A(f"v_bfe_u32 v5, v{VL}, 2, 1")
    A(f"v_bfe_u32 v6, v{VL}, 4, 1")
    A("v_xor_b32 v5, v5, v6")
    A("v_or_b32 v4, v4, v5")
    A("v_cmp_eq_u32 vcc, 0, v4")
    A("v_mov_b32 v5, 0x3f803f80")
    A("s_nop 0")
    A(f"v_cndmask_b32 v{ONES}, 0, v5, vcc")
    for r in range(1, 4): A(f"v_mov_b32 v{ONES+r}, v{ONES}")
    A("s_waitcnt lgkmcnt(0)")
    stamp("karg")
    for d, reg in ((12, 'KF'), (16, 'VF')):
        A(f"s_add_u32 s{d}, s8, {WS[reg]}")
        A(f"s_addc_u32 s{d+1}, s9, 0")
        A(f"s_and_b32 s{d+1}, s{d+1}, 0xffff")
        A(f"s_mov_b32 s{d+2}, 131072")
        A(f"s_mov_b32 s{d+3}, 0x00020000")
    srd(A, 24, "s8", "s9", 64 * MB)
    def dma(sl):
        return [f"s_add_u32 m0, s40, {sl*16384}", "s_nop 0",
                f"buffer_load_dwordx4 v{VD}, s[12:15], s37 offen lds",
                f"s_add_u32 m0, s40, {sl*16384 + 8192}", "s_nop 0",
                f"buffer_load_dwordx4 v{VD}, s[16:19], s37 offen lds",
                "s_add_u32 s37, s37, 8192"]
    A("s_lshl_b32 s3, s33, 17")
    A("s_lshl_b32 s10, s34, 11")
    A("s_add_u32 s3, s3, s10")
    A(f"s_add_u32 s3, s3, {WS['QF']}")
    A(f"buffer_load_dwordx4 {vr(Q,4)}, v{VK}, s[24:27], s3 offen")
    A(f"buffer_load_dwordx4 {vr(Q+4,4)}, v{VK}, s[24:27], s3 offen offset:1024")
    A(f"v_lshlrev_b32 v4, 3, v{VL}")
    A(f"s_mov_b32 s3, {WS['KMAX']}")
    A("buffer_load_dwordx2 v[6:7], v4, s[24:27], s3 offen")
    A("s_mov_b32 s37, 0")
    A(dma(0)); A(dma(1))
    UB = 66560; RB = UB + 65536
    A("s_cmp_ge_u32 s2, 224")
    A("s_cselect_b32 s51, 0, 1")
    A("s_cmp_ge_u32 s2, 112")
    A("s_cselect_b32 s52, 1, 0")
    A("s_cselect_b32 s20, s6, s4")
    A("s_cselect_b32 s21, s7, s5")
    A("s_mul_i32 s3, s52, 112")
    A("s_sub_u32 s53, s2, s3")
    A("s_lshl_b32 s3, s53, 6")
    A("s_add_u32 s20, s20, s3")
    A("s_addc_u32 s21, s21, 0")
    A("s_and_b32 s21, s21, 0xffff")
    A(f"s_sub_u32 s22, {1024*7168}, s3")
    A("s_mov_b32 s23, 0x00020000")
    A(f"v_lshrrev_b32 v2, 2, v{VL}")
    A("s_movk_i32 s3, 7168")
    A("v_mul_lo_u32 v2, v2, s3")
    A(f"v_and_b32 v3, 3, v{VL}")
    A("v_lshl_add_u32 v2, v3, 4, v2")
    A(f"s_mul_i32 s54, s32, {128*7168}")
    A("s_lshl_b32 s55, s32, 13")
    A(f"s_add_u32 s55, s55, {UB}")
    A("s_cmp_eq_u32 s51, 0")
    A(f"s_cbranch_scc1 {name}_nouw0")
    for i in range(8):
        A(f"s_add_u32 m0, s55, {i*1024}")
        A("s_nop 0")
        A("buffer_load_dwordx4 v2, s[20:23], s54 offen lds")
        A(f"s_add_u32 s54, s54, {16*7168}")
    A("s_waitcnt vmcnt(12)")
    A(f"s_branch {name}_nouw1")
    A(f"{name}_nouw0:")
    A("s_waitcnt vmcnt(4)")
    A(f"{name}_nouw1:")
    A("v_max_f32 v6, v6, v7")
    A("s_nop 1")
    for ror in (8, 4, 2, 1):
        A(f"v_max_f32_dpp v6, v6, v6 row_ror:{ror} row_mask:0xf bank_mask:0xf")
        A("s_nop 1")
    for perm in ("v_permlane16_swap_b32", "v_permlane32_swap_b32"):
        A("v_mov_b32 v7, v6")
        A("s_nop 1")
        A(f"{perm} v6, v7")
        A("s_nop 1")
        A("v_max_f32 v6, v6, v7")
    A("v_mov_b32 v2, 0")
    for d in range(8):
        A(f"v_lshlrev_b32 v3, 16, v{Q+d}")
        A(f"v_and_b32 v4, 0xffff0000, v{Q+d}")
        A("v_fmac_f32 v2, v3, v3")
        A("v_fmac_f32 v2, v4, v4")
    A("v_mov_b32 v3, v2")
    A("s_nop 1")
    A("v_permlane32_swap_b32 v2, v3")
    A("s_nop 1")
    A("v_add_f32 v2, v2, v3")
    A("v_mul_f32 v2, v2, v6")
    A("v_sqrt_f32 v2, v2")
    A("s_nop 0")
    A(f"v_sub_f32 v{MX}, 0, v2")
    if force_fallback:
        A(f"v_add_f32 v{MX}, 0xc3480000, v{MX}")
    A("s_mov_b32 s50, 0")
    A(f"{name}_restart:")
    for r in range(16): A(f"v_mov_b32 v{CI+r}, v{MX}")
    for r in range(16): A(f"v_mov_b32 v{O+r}, 0")
    for r in range(4): A(f"v_mov_b32 v{L+r}, 0")
    for r in range(8): A(f"v_mov_b32 v{P[1]+r}, 0")
    for r in range(8): A(f"v_mov_b32 v{VFR[1]+r}, 0")
    def kreads(tile16, buf):
        sl = (tile16 // 4) % 4; t = tile16 % 4
        return [f"ds_read_b128 {vr(KFR[buf]+4*h,4)}, v{VK} offset:{sl*16384 + t*2048 + h*1024}" for h in range(2)]
    def vreads(tile16, buf):
        sl = (tile16 // 4) % 4; t = tile16 % 4
        return [f"ds_read_b64_tr_b16 {vr(VFR[buf]+4*s+2*rd,2)}, v{VV} offset:{sl*16384 + t*2048 + s*1024 + rd*512}" for s in range(2) for rd in range(2)]
    A("s_cmp_eq_u32 s50, 0")
    A("s_cselect_b32 s3, s51, 0")
    A("s_cmp_eq_u32 s3, 1")
    A(f"s_cbranch_scc1 {name}_w10")
    A("s_waitcnt vmcnt(2)")
    A(f"s_branch {name}_w2")
    A(f"{name}_w10:")
    A("s_waitcnt vmcnt(10)")
    A(f"{name}_w2:")
    A("s_barrier")
    stamp("bar0")
    A(dma(2))
    A(kreads(0, 0)); A(kreads(1, 1))
    A("s_waitcnt lgkmcnt(0)")
    A(mfma32(S[0], KFR[0], Q, CI))
    A(mfma32(S[0], KFR[0] + 4, Q + 4, S[0]))
    A("s_mov_b32 s48, 4")
    stamp("loopstart")
    if dbg: A("s_waitcnt lgkmcnt(0)")
    A(f"{name}_loop:")
    for j in range(16):
        cur = j % 2; nxt = 1 - cur
        if j % 4 == 2:
            A("s_waitcnt vmcnt(2) lgkmcnt(0)")
            A("s_barrier")
        else:
            A("s_waitcnt lgkmcnt(0)")
        m = [mfma32(S[nxt], KFR[nxt], Q, CI), mfma32(S[nxt], KFR[nxt] + 4, Q + 4, S[nxt]),
             mfma32(O, VFR[nxt], P[nxt], O), mfma32(O, VFR[nxt] + 4, P[nxt] + 4, O),
             mfma16(L, ONES, P[nxt], L), mfma16(L, ONES, P[nxt] + 4, L)]
        v = []
        for i in range(8):
            v.append(f"v_exp_f32 v{S[cur]+2*i}, v{S[cur]+2*i}")
            v.append(f"v_exp_f32 v{S[cur]+2*i+1}, v{S[cur]+2*i+1}")
            v.append(f"v_cvt_pk_bf16_f32 v{P[cur]+i}, v{S[cur]+2*i}, v{S[cur]+2*i+1}")
        v2 = []
        for i in range(8):
            v2 += [v[3*i], v[3*i+1]]
            if i > 0: v2.append(v[3*(i-1)+2])
        v2.append("s_nop 0")
        v2.append(v[3*7+2])
        mem = kreads((j + 2) % 16, cur) + vreads(j, cur)
        if j % 4 == 2: mem = mem + [dma(((j + 2) // 4 + 2) % 4)]
        seq = []
        per = len(v2) / len(m); k = 0; km = 0
        for i, mm in enumerate(m):
            seq.append(mm)
            if km < len(mem):
                take = 2 if i < 3 else len(mem)
                for f in mem[km:km+take]:
                    if isinstance(f, list): seq.extend(f)
                    else: seq.append(f)
                km += take
            hi = round((i + 1) * per); seq += v2[k:hi]; k = hi
        A(seq)
    A("s_sub_u32 s48, s48, 1")
    A("s_cmp_lg_u32 s48, 0")
    A(f"s_cbranch_scc1 {name}_loop")
    stamp("loopend")
    A("s_waitcnt lgkmcnt(0)")
    A(mfma32(O, VFR[1], P[1], O)); A(mfma32(O, VFR[1] + 4, P[1] + 4, O))
    A(mfma16(L, ONES, P[1], L)); A(mfma16(L, ONES, P[1] + 4, L))
    A("s_nop 15")
    A("s_nop 7")
    A("s_cmp_eq_u32 s50, 0")
    A("s_cselect_b32 s3, s51, 0")
    A("s_cmp_eq_u32 s3, 1")
    A(f"s_cbranch_scc0 {name}_nouw2")
    A("s_waitcnt vmcnt(0)")
    A(f"v_and_b32 v2, 15, v{VL}")
    A(f"v_lshrrev_b32 v3, 4, v{VL}")
    A("v_lshlrev_b32 v4, 5, v3")
    A("s_lshl_b32 s3, s32, 9")
    A("v_add_u32 v4, s3, v4")
    A("v_lshlrev_b32 v5, 12, v2")
    A("v_sub_u32 v4, v4, v5")
    A(f"v_add_u32 v4, {WS['MOD'] + 4*4096}, v4")
    A("v_cmp_gt_u32 vcc, 2, v2")
    A("v_mov_b32 v5, 0x7f000000")
    A("s_nop 0")
    A("v_cndmask_b32 v4, v5, v4, vcc")
    for sp in range(4):
        A(f"buffer_load_dwordx4 {vr(S[0]+8*sp,4)}, v4, s[24:27], 0 offen offset:{128*sp}")
        A(f"buffer_load_dwordx4 {vr(S[0]+8*sp+4,4)}, v4, s[24:27], 0 offen offset:{128*sp+16}")
    A(f"v_bfe_u32 v5, v{VL}, 2, 2")
    A("v_lshl_add_u32 v5, v3, 3, v5")
    A("v_lshlrev_b32 v5, 6, v5")
    A(f"v_and_b32 v6, 3, v{VL}")
    A("v_lshl_add_u32 v5, v6, 3, v5")
    A("v_add_u32 v5, s55, v5")
    WF = 88
    for sp in range(4):
        for b in range(2):
            for rd in range(2):
                A(f"ds_read_b64_tr_b16 {vr(WF+sp*8+b*4+2*rd,2)}, v5 offset:{sp*2048 + b*32 + rd*256}")
    for r in range(8): A(f"v_mov_b32 v{120+r}, 0")
    A("s_waitcnt vmcnt(0)")
    for sp in range(4):
        for d in range(4):
            A(f"v_cvt_pk_bf16_f32 v{128+sp*4+d if False else CI+sp*4+d}, v{S[0]+8*sp+2*d}, v{S[0]+8*sp+2*d+1}")
    A("s_waitcnt lgkmcnt(0)")
    A("s_nop 1")
    for sp in range(4):
        for b in range(2):
            A(mfma16(120 + 4*b, WF + sp*8 + b*4, CI + sp*4, 120 + 4*b))
    A("s_nop 15")
    A("v_lshlrev_b32 v4, 6, v2")
    A("v_lshl_add_u32 v4, v3, 4, v4")
    A("s_lshl_b32 s3, s32, 8")
    A(f"s_add_u32 s3, s3, {RB}")
    A("v_add_u32 v4, s3, v4")
    A("v_cmp_gt_u32 vcc, 2, v2")
    A("s_and_saveexec_b64 s[10:11], vcc")
    A("ds_write_b128 v4, v[120:123]")
    A("ds_write_b128 v4, v[124:127] offset:128")
    A("s_mov_b64 exec, s[10:11]")
    A("s_waitcnt lgkmcnt(0)")
    A(f"{name}_nouw2:")
    A("s_waitcnt vmcnt(0)")
    A("s_barrier")
    A("s_cmp_eq_u32 s50, 1")
    A(f"s_cbranch_scc1 {name}_out")
    A("s_cmp_eq_u32 s32, 0")
    A("s_cselect_b32 s3, s51, 0")
    A("s_cmp_eq_u32 s3, 1")
    A(f"s_cbranch_scc0 {name}_nouw3")
    A(f"v_lshlrev_b32 v4, 2, v{VL}")
    A(f"v_add_u32 v4, {RB}, v4")
    for w in range(8): A(f"ds_read_b32 v{120+w}, v4 offset:{w*256}")
    A("s_waitcnt lgkmcnt(0)")
    for w in range(1, 8): A(f"v_add_f32 v120, v120, v{120+w}")
    A(f"v_bfe_u32 v5, v{VL}, 4, 1")
    A("s_mov_b32 s3, 14336")
    A("v_mul_lo_u32 v5, v5, s3")
    A(f"v_lshrrev_b32 v6, 5, v{VL}")
    A("v_lshl_add_u32 v5, v6, 6, v5")
    A(f"v_and_b32 v6, 15, v{VL}")
    A("v_lshl_add_u32 v5, v6, 2, v5")
    A("s_mul_i32 s3, s52, 28672")
    A("s_lshl_b32 s10, s53, 7")
    A("s_add_u32 s3, s3, s10")
    A(f"s_add_u32 s3, s3, {WS['UW']}")
    A("buffer_store_dword v120, v5, s[24:27], s3 offen")
    A(f"{name}_nouw3:")
    A("v_mov_b32 v2, 0x17800000")
    A(f"v_cmp_nge_f32 vcc, v{L}, v2")
    A("v_mov_b32 v3, 0")
    A(f"v_mov_b32 v4, {FLAG}")
    A("ds_write_b32 v4, v3")
    A("s_waitcnt lgkmcnt(0)")
    A("s_barrier")
    A("s_cmp_eq_u64 vcc, 0")
    A(f"s_cbranch_scc1 {name}_noflag")
    A("v_mov_b32 v3, 1")
    A("ds_write_b32 v4, v3")
    A(f"{name}_noflag:")
    A("s_waitcnt lgkmcnt(0)")
    A("s_barrier")
    A("ds_read_b32 v3, v4")
    A("s_waitcnt lgkmcnt(0)")
    A("v_readfirstlane_b32 s3, v3")
    A("s_cmp_eq_u32 s3, 0")
    A(f"s_cbranch_scc1 {name}_out")
    A(f"v_mov_b32 v{MX}, 0xff800000")
    A("s_mov_b32 s37, 0")
    A("s_mov_b32 s48, 16")
    A(f"{name}_mx:")
    A("s_barrier")
    A(dma(0))
    A("s_waitcnt vmcnt(0)")
    A("s_barrier")
    for t in range(4):
        A(kreads(t, 0))
        A("s_waitcnt lgkmcnt(0)")
        A(mfma32(S[0], KFR[0], Q, "0"))
        A(mfma32(S[0], KFR[0] + 4, Q + 4, S[0]))
        A("s_nop 15")
        for i in range(8):
            A(f"v_max3_f32 v{MX}, v{S[0]+2*i}, v{S[0]+2*i+1}, v{MX}")
    A("s_sub_u32 s48, s48, 1")
    A("s_cmp_lg_u32 s48, 0")
    A(f"s_cbranch_scc1 {name}_mx")
    A(f"v_mov_b32 v3, v{MX}")
    A("s_nop 1")
    A(f"v_permlane32_swap_b32 v{MX}, v3")
    A("s_nop 1")
    A(f"v_max_f32 v{MX}, v{MX}, v3")
    A(f"v_sub_f32 v{MX}, 0, v{MX}")
    A("s_mov_b32 s50, 1")
    A("s_mov_b32 s37, 0")
    A("s_barrier")
    A(dma(0)); A(dma(1))
    A(f"s_branch {name}_restart")
    A(f"{name}_out:")
    A(f"v_rcp_f32 v2, v{L}")
    A("s_nop 0")
    for r in range(16): A(f"v_mul_f32 v{O+r}, v{O+r}, v2")
    for d in range(8): A(f"v_cvt_pk_bf16_f32 v{8+d}, v{O+2*d}, v{O+2*d+1}")
    A(f"v_and_b32 v3, 31, v{VL}")
    A("v_lshrrev_b32 v4, 4, v3")
    A("v_lshlrev_b32 v4, 10, v4")
    A("v_and_b32 v5, 15, v3")
    A("v_lshl_add_u32 v4, v5, 4, v4")
    A(f"v_lshrrev_b32 v5, 5, v{VL}")
    A("v_lshl_add_u32 v4, v5, 9, v4")
    A("s_lshl_b32 s3, s33, 17")
    A("s_lshl_b32 s10, s34, 11")
    A("s_add_u32 s3, s3, s10")
    A(f"s_add_u32 s3, s3, {WS['OF']}")
    A("buffer_store_dwordx4 v[8:11], v4, s[24:27], s3 offen")
    A("buffer_store_dwordx4 v[12:15], v4, s[24:27], s3 offen offset:256")
    if dbg:
        stamp("stored")
        A("s_waitcnt vmcnt(0)")
        stamp("end")
        A("s_memrealtime s[98:99]")
        A("s_waitcnt lgkmcnt(0)")
        A("s_lshl_b32 s3, s2, 3")
        A("s_add_u32 s3, s3, s32")
        A("s_lshl_b32 s3, s3, 6")
        A(f"s_add_u32 s3, s3, {WS['DBG'] + dbg * 131072}")
        A("v_mov_b32 v4, 0")
        for n in range(len(stamps)):
            if n > 0: A(f"s_sub_u32 s{60+2*n}, s{60+2*n}, s60")
            A(f"v_mov_b32 v{16+n}, s{60+2*n}")
        A("v_mov_b32 v28, s96")
        A("v_mov_b32 v29, s98")
        for q in range(4):
            A(f"buffer_store_dwordx4 v[{16+4*q}:{19+4*q}], v4, s[24:27], s3 offen offset:{16*q}")
    A(f"{name}_end:")
    A("s_endpgm")
    kernel_end(A, name, 144)
    return dict(name=name, grid=256, block=512, lds=66560 + 65536 + 2048, stamps=stamps)
```

```python
from asmlib import *

def gen_k5(A, name="k5_kernel", dbg=False, npre=2):
    SLOT = 30720
    WOFF = 16384
    UPOFF = 7168
    DUMMY = 4 * SLOT
    ACC = 16
    FB = [128, 172]
    def acc(u, i): return ACC + (u * 4 + i) * 4
    def fact(b, i): return FB[b] + 4 * i
    def fw(b, u): return FB[b] + 16 + 4 * u
    VACT = [216, 217]; VW = [218, 219]; VW7 = [220, 221]
    VDA = 222; VDW = 223
    R2 = 224; NMEAN = 228; STD = 232
    VL = 236
    stamps = []
    def stamp(tag):
        if dbg:
            r = 60 + 2 * len(stamps)
            stamps.append(tag)
            A(f"s_memtime s[{r}:{r+1}]")
    kernel_begin(A, name)
    A("s_cmp_ge_u32 s2, 256")
    A(f"s_cbranch_scc1 {name}_end")
    A(f"s_load_dwordx4 s[4:7], s[0:1], {KA['wg']}")
    A(f"s_load_dwordx2 s[8:9], s[0:1], {KA['ws']}")
    stamp("start")
    if dbg: A("s_memrealtime s[96:97]")
    A("v_lshrrev_b32 v1, 6, v0")
    A(f"v_and_b32 v{VL}, 63, v0")
    A("v_readfirstlane_b32 s28, v1")
    A("s_and_b32 s3, s2, 7")
    A("s_lshl_b32 s32, s3, 2")
    A("s_lshr_b32 s3, s2, 3")
    A("s_and_b32 s3, s3, 3")
    A("s_add_u32 s32, s32, s3")
    A("s_lshr_b32 s31, s2, 5")
    A("s_and_b32 s29, s28, 3")
    A("s_lshr_b32 s30, s28, 2")
    A(f"v_lshlrev_b32 v{VDA}, 4, v{VL}")
    A("s_lshl_b32 s3, s28, 11")
    A(f"v_add_u32 v{VDA}, s3, v{VDA}")
    A("s_lshl_b32 s3, s28, 6")
    A(f"v_add_u32 v5, s3, v{VL}")
    A("s_movk_i32 s3, 4682")
    A("v_mul_lo_u32 v6, v5, s3")
    A("v_lshrrev_b32 v6, 16, v6")
    A("v_mul_u32_u24 v7, 14, v6")
    A("v_sub_u32 v7, v5, v7")
    A("s_movk_i32 s3, 7168")
    A("v_mul_lo_u32 v6, v6, s3")
    A(f"v_lshl_add_u32 v{VDW}, v7, 4, v6")
    A("s_cmp_eq_u32 s28, 7")
    A("s_cbranch_scc0 " + name + "_notw7")
    A(f"v_mov_b32 v{VDW}, 0x40000000")
    A(name + "_notw7:")
    A("s_lshl_b32 s33, s28, 11")
    A("s_lshl_b32 s34, s28, 10")
    for sl in range(4):
        A(f"s_add_u32 s{36+sl}, s33, {sl*SLOT}")
        A(f"s_add_u32 s{40+sl}, s34, {sl*SLOT + WOFF}")
        A(f"s_add_u32 s{44+sl}, s34, {sl*SLOT + WOFF + UPOFF}")
        A("s_cmp_eq_u32 s28, 7")
        A(f"s_cselect_b32 s{40+sl}, {DUMMY}, s{40+sl}")
        A(f"s_cselect_b32 s{44+sl}, {DUMMY+1024}, s{44+sl}")
    A("s_lshl_b32 s33, s31, 14")
    A("s_mov_b32 s34, 0")
    A("s_mul_i32 s3, s32, 224")
    A("s_waitcnt lgkmcnt(0)")
    stamp("karg")
    A(f"s_add_u32 s12, s8, {WS['YF']}")
    A("s_addc_u32 s13, s9, 0")
    A("s_and_b32 s13, s13, 0xffff")
    A(f"s_mov_b32 s14, {4*MB}")
    A("s_mov_b32 s15, 0x00020000")
    A("s_add_u32 s16, s4, s3")
    A("s_addc_u32 s17, s5, 0")
    A("s_and_b32 s17, s17, 0xffff")
    A(f"s_sub_u32 s18, {1024*7168}, s3")
    A("s_mov_b32 s19, 0x00020000")
    A("s_add_u32 s20, s6, s3")
    A("s_addc_u32 s21, s7, 0")
    A("s_and_b32 s21, s21, 0xffff")
    A("s_mov_b32 s22, s18")
    A("s_mov_b32 s23, 0x00020000")
    def dma(sl):
        return [
            [f"s_mov_b32 m0, s{36+sl}", "s_nop 0", f"buffer_load_dwordx4 v{VDA}, s[12:15], s33 offen lds"],
            [f"buffer_load_dwordx4 v{VDA}, s[12:15], s33 offen offset:1024 lds", f"s_add_u32 s33, s33, 131072"],
            [f"s_mov_b32 m0, s{40+sl}", "s_nop 0", f"buffer_load_dwordx4 v{VDW}, s[16:19], s34 offen lds"],
            [f"s_mov_b32 m0, s{44+sl}", "s_nop 0", f"buffer_load_dwordx4 v{VDW}, s[20:23], s34 offen lds", f"s_add_u32 s34, s34, {32*7168}"],
        ]
    for grp in dma(0): A(grp)
    A("s_mov_b32 s24, s8")
    A("s_and_b32 s25, s9, 0xffff")
    A(f"s_mov_b32 s26, {64*MB}")
    A("s_mov_b32 s27, 0x00020000")
    A(f"v_and_b32 v2, 15, v{VL}")
    A(f"v_lshrrev_b32 v3, 4, v{VL}")
    A("v_lshlrev_b32 v4, 3, v2")
    A("s_lshl_b32 s3, s31, 11")
    A("s_lshl_b32 s49, s29, 9")
    A("s_add_u32 s3, s3, s49")
    A(f"s_add_u32 s3, s3, {WS['STAT']}")
    for i in range(4):
        A(f"buffer_load_dwordx2 {vr(128+2*i,2)}, v4, s[24:27], s3 offen offset:{i*128}")
    A("v_lshlrev_b32 v4, 4, v3")
    A("s_lshl_b32 s3, s30, 8")
    A("v_add_u32 v9, s3, v4")
    A("s_mul_i32 s3, s32, 448")
    A(f"s_add_u32 s50, s3, {WS['UW']}")
    A("s_add_u32 s51, s50, 14336")
    A("s_add_u32 s52, s51, 14336")
    A("s_add_u32 s53, s52, 14336")
    A("s_mul_i32 s3, s30, 28672")
    A("s_add_u32 s54, s50, s3")
    A("s_add_u32 s55, s54, 14336")
    UWR = 160
    for u in range(6):
        A(f"buffer_load_dwordx4 {vr(UWR+u*8,4)}, v9, s[24:27], s{50+2*(u%2)} offen offset:{(u//2)*64}")
        A(f"buffer_load_dwordx4 {vr(UWR+u*8+4,4)}, v9, s[24:27], s{51+2*(u%2)} offen offset:{(u//2)*64}")
    A(f"buffer_load_dwordx4 {vr(UWR+48,4)}, v4, s[24:27], s54 offen offset:192")
    A(f"buffer_load_dwordx4 {vr(UWR+52,4)}, v4, s[24:27], s55 offen offset:192")
    for sl in range(1, npre):
        for grp in dma(sl): A(grp)
    nafter = 4 * (npre - 1)
    A(f"v_lshlrev_b32 v{VACT[0]}, 4, v{VL}")
    A("s_lshl_b32 s3, s29, 12")
    A(f"v_add_u32 v{VACT[0]}, s3, v{VACT[0]}")
    A(f"v_add_u32 v{VACT[1]}, {2*SLOT}, v{VACT[0]}")
    A(f"v_lshrrev_b32 v5, 2, v{VL}")
    A("v_mul_u32_u24 v5, 224, v5")
    A(f"v_and_b32 v6, 3, v{VL}")
    A("v_lshl_add_u32 v5, v6, 3, v5")
    A(f"v_add_u32 v5, {WOFF}, v5")
    A("s_lshl_b32 s3, s30, 7")
    A(f"v_add_u32 v{VW[0]}, s3, v5")
    A(f"v_add_u32 v{VW[1]}, {2*SLOT}, v{VW[0]}")
    A(f"s_mul_i32 s3, s30, {UPOFF}")
    A("s_add_u32 s3, s3, 96")
    A(f"v_add_u32 v{VW7[0]}, s3, v5")
    A(f"v_add_u32 v{VW7[1]}, {2*SLOT}, v{VW7[0]}")
    stamp("prestat")
    A(f"s_waitcnt vmcnt({14 + nafter})")
    stamp("stat")
    A("s_mov_b32 s3, 0x3a800000")
    A("s_mov_b32 s35, 0x3727c5ac")
    for i in range(4):
        b = 128 + 2 * i
        A(f"v_mul_f32 v{b}, s3, v{b}")
        A(f"v_mul_f32 v{b+1}, s3, v{b+1}")
        A(f"v_fma_f32 v{b+1}, -v{b}, v{b}, v{b+1}")
        A(f"v_max_f32 v{b+1}, 0, v{b+1}")
        A(f"v_add_f32 v{b+1}, s35, v{b+1}")
        A(f"v_rcp_f32 v{R2+i}, v{b+1}")
        A(f"v_sqrt_f32 v{STD+i}, v{b+1}")
        A(f"v_sub_f32 v{NMEAN+i}, 0, v{b}")
    A(f"s_waitcnt vmcnt({nafter})")
    for u in range(7):
        for i in range(4):
            for r in range(4):
                a = acc(u, i) + r
                A(f"v_mul_f32 v{a}, v{STD+i}, v{UWR+u*8+4+r}")
                A(f"v_fmac_f32 v{a}, v{NMEAN+i}, v{UWR+u*8+r}")
    def reads(sl, b):
        h = sl // 2; so = (sl % 2) * SLOT
        r = []
        for i in range(4):
            r.append(f"ds_read_b128 {vr(fact(b,i),4)}, v{VACT[h]} offset:{so + i*1024}")
        for u in range(7):
            for rd in range(2):
                if u < 6:
                    off = so + rd * 3584 + (u % 2) * UPOFF + (u // 2) * 32
                    r.append(f"ds_read_b64_tr_b16 {vr(fw(b,u)+2*rd,2)}, v{VW[h]} offset:{off}")
                else:
                    off = so + rd * 3584
                    r.append(f"ds_read_b64_tr_b16 {vr(fw(b,u)+2*rd,2)}, v{VW7[h]} offset:{off}")
        return r
    A("s_barrier")
    stamp("bar0")
    A(reads(0, 0))
    for sl in range(npre, 4):
        for grp in dma(sl): A(grp)
    A("s_mov_b32 s48, 8")
    stamp("loopstart")
    if dbg: A("s_waitcnt lgkmcnt(0)")
    A(f"{name}_loop:")
    for j in range(4):
        b = j % 2
        A("s_waitcnt vmcnt(8) lgkmcnt(0)")
        A("s_barrier")
        mf = [mfma16(acc(u, i), fw(b, u), fact(b, i), acc(u, i)) for u in range(7) for i in range(4)]
        rd = reads((j + 1) % 4, 1 - b)
        dm = dma(j)
        seq = interleave(mf, rd, 0, 19)
        out = []
        mi = 0
        pos = {3: 0, 9: 1, 15: 2, 21: 3}
        for ins in seq:
            out.append(ins)
            if ins.startswith("v_mfma"):
                if mi in pos: out.extend(dm[pos[mi]])
                mi += 1
        A(out)
    A("s_sub_u32 s48, s48, 1")
    A("s_cmp_lg_u32 s48, 0")
    A(f"s_cbranch_scc1 {name}_loop")
    stamp("loopend")
    A("s_waitcnt vmcnt(0) lgkmcnt(0)")
    A("s_barrier")
    stamp("epibar")
    XR = 192
    A(f"v_lshlrev_b32 v5, 4, v{VL}")
    A("s_lshl_b32 s3, s29, 12")
    A("v_add_u32 v5, s3, v5")
    A("s_cmp_eq_u32 s30, 1")
    A(f"s_cbranch_scc0 {name}_x1")
    for i in range(4):
        A(f"ds_write_b128 v5, {vr(acc(6,i),4)} offset:{i*1024}")
    A(f"{name}_x1:")
    A("s_waitcnt lgkmcnt(0)")
    A("s_barrier")
    A("s_cmp_eq_u32 s30, 0")
    A(f"s_cbranch_scc0 {name}_x2")
    for i in range(4):
        A(f"ds_read_b128 {vr(XR+4*i,4)}, v5 offset:{i*1024}")
    A(f"{name}_x2:")
    A(f"v_lshlrev_b32 v6, 4, v{VL}")
    A("s_lshl_b32 s3, s31, 14")
    A("s_lshl_b32 s54, s29, 12")
    A("s_add_u32 s3, s3, s54")
    A("v_add_u32 v6, s3, v6")
    A("s_lshr_b32 s55, s32, 1")
    A("s_mul_i32 s55, s55, 7")
    A("s_and_b32 s56, s32, 1")
    A("s_mul_i32 s57, s56, 3")
    A("s_add_u32 s57, s57, s55")
    def htile(G, U):
        for i in range(4):
            for r in range(4):
                g = G(i) + r; u = U(i) + r
                A(f"v_mul_f32 v{u}, v{R2+i}, v{u}")
                A(f"v_max_f32 v{g}, 0, v{g}")
                A(f"v_mul_f32 v{g}, v{g}, v{u}")
    def pair(G0, G1, sreg):
        for i in range(4):
            t = 8 + 4 * (i % 2)
            A(f"v_cvt_pk_bf16_f32 v{t}, v{G0(i)}, v{G0(i)+1}")
            A(f"v_cvt_pk_bf16_f32 v{t+1}, v{G0(i)+2}, v{G0(i)+3}")
            A(f"v_cvt_pk_bf16_f32 v{t+2}, v{G1(i)}, v{G1(i)+1}")
            A(f"v_cvt_pk_bf16_f32 v{t+3}, v{G1(i)+2}, v{G1(i)+3}")
            A(f"buffer_store_dwordx4 v[{t}:{t+3}], v6, s[24:27], {sreg} offen offset:{i*1024}")
    ua = lambda u: (lambda i: acc(u, i))
    htile(ua(0), ua(1)); htile(ua(2), ua(3))
    A("s_lshl_b32 s3, s30, 1")
    A("s_add_u32 s3, s3, s57")
    A("s_lshl_b32 s3, s3, 17")
    A(f"s_add_u32 s3, s3, {WS['HF']}")
    pair(ua(0), ua(2), "s3")
    htile(ua(4), ua(5))
    A("s_cmp_eq_u32 s30, 0")
    A(f"s_cbranch_scc0 {name}_single")
    A("s_waitcnt lgkmcnt(0)")
    htile(ua(6), lambda i: XR + 4 * i)
    A("s_add_u32 s3, s57, 1")
    A("s_lshl_b32 s3, s3, 17")
    A(f"s_add_u32 s3, s3, {WS['HF']}")
    pair(ua(4), ua(6), "s3")
    A(f"s_branch {name}_fin")
    A(f"{name}_single:")
    A("s_add_u32 s3, s55, 6")
    A("s_lshl_b32 s3, s3, 17")
    A("s_lshl_b32 s56, s56, 3")
    A("s_add_u32 s3, s3, s56")
    A(f"s_add_u32 s3, s3, {WS['HF']}")
    for i in range(4):
        t = 8 + 2 * (i % 2)
        A(f"v_cvt_pk_bf16_f32 v{t}, v{acc(4,i)}, v{acc(4,i)+1}")
        A(f"v_cvt_pk_bf16_f32 v{t+1}, v{acc(4,i)+2}, v{acc(4,i)+3}")
        A(f"buffer_store_dwordx2 v[{t}:{t+1}], v6, s[24:27], s3 offen offset:{i*1024}")
    A(f"{name}_fin:")
    if dbg:
        stamp("stored")
        A("s_waitcnt vmcnt(0)")
        stamp("end")
        A("s_memrealtime s[98:99]")
        A("s_waitcnt lgkmcnt(0)")
        A("s_lshl_b32 s3, s2, 3")
        A("s_add_u32 s3, s3, s28")
        A("s_lshl_b32 s3, s3, 6")
        A(f"s_add_u32 s3, s3, {WS['DBG'] + dbg * 131072}")
        A("v_mov_b32 v4, 0")
        for n in range(len(stamps)):
            if n > 0: A(f"s_sub_u32 s{60+2*n}, s{60+2*n}, s60")
            A(f"v_mov_b32 v{16+n}, s{60+2*n}")
        A("v_mov_b32 v28, s96")
        A("v_mov_b32 v29, s98")
        for q in range(4):
            A(f"buffer_store_dwordx4 v[{16+4*q}:{19+4*q}], v4, s[24:27], s3 offen offset:{16*q}")
    A(f"{name}_end:")
    A("s_endpgm")
    kernel_end(A, name, 240)
    return dict(name=name, grid=256, block=512, lds=4*SLOT+2048, stamps=stamps)

if __name__ == "__main__":
    import sys
    A = Asm()
    A('.amdgcn_target "amdgcn-amd-amdhsa--gfx950"')
    info = gen_k5(A, dbg=(len(sys.argv) > 1), npre=int(sys.argv[2]) if len(sys.argv) > 2 else 2)
    open("k5.s", "w").write(A.text())
    open("k5.stamps", "w").write(" ".join(info["stamps"]))
    print(info)
```

```python
from asmlib import *

QSCALE = 0.17677669529663687 * 1.4426950408889634

def f32hex(x):
    import struct
    return "0x%08x" % struct.unpack("<I", struct.pack("<f", x))[0]

def gen_s2(A, kind, name, dbg=False):
    NST = {'k2': 16, 'k4': 16, 'k6': 56}[kind]
    R = 8; NB = 8
    XTRA = kind == 'k2'
    NAT = kind in ('k2', 'k4')
    SL = 8192
    XBASE = R * SL
    TBL = XBASE + R * 4096
    DUMMY = TBL + 8192
    LDS = (DUMMY + 1024) if XTRA else R * SL
    ACC = 16
    def acc(i, b): return ACC + (i * 4 + b) * 4
    XACC = 48
    AB = 64
    def abuf(n, i): return AB + n * 8 + i * 4
    def fw(p, b): return 128 + p * 16 + b * 4
    def fx(p, b): return 160 + p * 8 + b * 4
    VA, VA2, VW, VX = 176, 177, 178, 179
    VT = [180, 181, 182, 183]; VTX = [184, 185]
    VL = 186; VTB = 187
    TA1 = 188; TSA = 196; TU = 204
    EPO = 212; EPM = 213; XR = 214; GA = 222; A2 = 238
    stamps = []
    def stamp(tag):
        if dbg:
            r = 60 + 2 * len(stamps); stamps.append(tag)
            A(f"s_memtime s[{r}:{r+1}]")
    wname = {'k2': 'wq', 'k4': 'wo', 'k6': 'wd'}[kind]
    areg = {'k2': 'XN', 'k4': 'OF', 'k6': 'HF'}[kind]
    asize = {'k2': 4*MB, 'k4': 4*MB, 'k6': 112*131072}[kind]
    wsize = {'k2': 2*MB, 'k4': 2*MB, 'k6': 3584*2048}[kind]
    kernel_begin(A, name)
    A("s_cmp_ge_u32 s2, 256")
    A(f"s_cbranch_scc1 {name}_end")
    A(f"s_load_dwordx2 s[4:5], s[0:1], {KA[wname]}")
    A(f"s_load_dwordx2 s[8:9], s[0:1], {KA['ws']}")
    if kind == 'k2': A(f"s_load_dwordx4 s[44:47], s[0:1], {KA['wk']}")
    if kind == 'k4': A(f"s_load_dwordx2 s[44:45], s[0:1], {KA['x']}")
    if kind == 'k6': A(f"s_load_dwordx2 s[44:45], s[0:1], {KA['out']}")
    stamp("start")
    if dbg: A("s_memrealtime s[96:97]")
    A("v_lshrrev_b32 v1, 6, v0")
    A(f"v_and_b32 v{VL}, 63, v0")
    A("v_readfirstlane_b32 s32, v1")
    A("s_and_b32 s3, s2, 7")
    A("s_lshr_b32 s10, s2, 3")
    A("s_lshr_b32 s35, s3, 1")
    A("s_lshl_b32 s35, s35, 2")
    A("s_and_b32 s11, s10, 3")
    A("s_add_u32 s35, s35, s11")
    A("s_and_b32 s36, s3, 1")
    A("s_lshl_b32 s36, s36, 3")
    A("s_lshr_b32 s11, s10, 2")
    A("s_add_u32 s36, s36, s11")
    A("s_lshr_b32 s33, s32, 2")
    A("s_and_b32 s34, s32, 3")
    if XTRA:
        A("s_bfe_u32 s41, s36, 0x10001")
    else:
        A("s_mov_b32 s41, 0")
    A(f"v_lshlrev_b32 v{VA}, 4, v{VL}")
    A("s_lshl_b32 s3, s34, 11")
    A("s_lshl_b32 s10, s35, 13")
    A("s_add_u32 s3, s3, s10")
    A("s_lshl_b32 s10, s33, 17")
    A("s_add_u32 s3, s3, s10")
    A(f"v_add_u32 v{VA}, s3, v{VA}")
    A("s_lshl_b32 s10, s41, 10")
    A(f"v_add_u32 v{VA2}, 1024, v{VA}")
    A(f"v_subrev_u32 v{VA2}, s10, v{VA2}")
    A(f"v_add_u32 v{VA}, s10, v{VA}")
    A(f"v_lshrrev_b32 v2, 3, v{VL}")
    A("s_lshl_b32 s3, s32, 3")
    A("v_add_u32 v3, s3, v2")
    def sigma(dst, row, t):
        if NAT:
            A(f"v_bfe_u32 v{dst}, v{row}, 1, 1")
            A(f"v_bfe_u32 v{t}, v{row}, 3, 1")
            A(f"v_lshl_or_b32 v{dst}, v{t}, 1, v{dst}")
        else:
            A(f"v_bfe_u32 v{dst}, v{row}, 1, 2")
    sigma(4, 3, 5)
    A(f"v_bfe_u32 v5, v{VL}, 1, 2")
    A("v_xor_b32 v5, v5, v4")
    A(f"v_and_b32 v6, 1, v{VL}")
    A("v_lshl_or_b32 v5, v5, 1, v6")
    A("v_lshlrev_b32 v5, 4, v5")
    if kind == 'k6':
        A("s_and_b32 s3, s32, 1")
        A("s_lshl_b32 s3, s3, 3")
        A("v_add_u32 v6, s3, v2")
        A(f"v_lshl_add_u32 v{VW}, v6, 11, v5")
    else:
        A(f"v_lshl_add_u32 v{VW}, v3, 11, v5")
    if XTRA:
        A(f"v_lshrrev_b32 v2, 2, v{VL}")
        A("s_lshl_b32 s3, s32, 4")
        A("v_add_u32 v3, s3, v2")
        A("v_bfe_u32 v4, v3, 3, 1")
        A(f"v_bfe_u32 v5, v{VL}, 1, 1")
        A("v_xor_b32 v5, v5, v4")
        A(f"v_and_b32 v6, 1, v{VL}")
        A("v_lshl_or_b32 v5, v5, 1, v6")
        A("v_lshlrev_b32 v5, 4, v5")
        A(f"v_lshl_add_u32 v{VX}, v3, 6, v5")
        A("s_cmp_ge_u32 s32, 4")
        A(f"s_cbranch_scc0 {name}_xok")
        A(f"v_mov_b32 v{VX}, 0x40000000")
        A(f"{name}_xok:")
        A("s_lshl_b32 s42, s32, 10")
        A(f"s_add_u32 s42, s42, {XBASE}")
        A("s_cmp_ge_u32 s32, 4")
        A(f"s_cselect_b32 s42, {DUMMY}, s42")
        A("s_cselect_b32 s43, 0, 4096")
    A("s_lshl_b32 s40, s32, 10")
    A("s_waitcnt lgkmcnt(0)")
    stamp("karg")
    A(f"s_add_u32 s12, s8, {WS[areg]}")
    A("s_addc_u32 s13, s9, 0")
    A("s_and_b32 s13, s13, 0xffff")
    A(f"s_mov_b32 s14, {asize}")
    A("s_mov_b32 s15, 0x00020000")
    A("s_lshl_b32 s3, s36, 7")
    A("s_add_u32 s16, s4, s3")
    A("s_addc_u32 s17, s5, 0")
    A("s_and_b32 s17, s17, 0xffff")
    A(f"s_sub_u32 s18, {wsize}, s3")
    A("s_mov_b32 s19, 0x00020000")
    A("s_mov_b32 s24, s8")
    A("s_and_b32 s25, s9, 0xffff")
    A(f"s_mov_b32 s26, {64*MB}")
    A("s_mov_b32 s27, 0x00020000")
    if XTRA:
        A("s_and_b32 s56, s36, 1")
        A("s_cmp_eq_u32 s56, 1")
        A("s_cselect_b32 s20, s46, s44")
        A("s_cselect_b32 s21, s47, s45")
        A("s_and_b32 s21, s21, 0xffff")
        A("s_mov_b32 s22, 65536")
        A("s_mov_b32 s23, 0x00020000")
    else:
        A("s_mov_b32 s28, s44")
        A("s_and_b32 s29, s45, 0xffff")
        A(f"s_mov_b32 s30, {4*MB}")
        A("s_mov_b32 s31, 0x00020000")
    A("s_mov_b32 s37, 0")
    A("s_mov_b32 s39, 0")
    if kind == 'k6':
        A("s_mov_b32 s50, 0")
        A("s_lshr_b32 s51, s32, 2")
        A("s_bfe_u32 s52, s32, 0x10001")
    else:
        A("s_mov_b32 s38, 0")
    def wsoff():
        if kind != 'k6': return []
        return ["s_lshl_b32 s53, s51, 1",
                "s_add_u32 s53, s53, s52",
                "s_cmp_ge_u32 s51, 3",
                "s_addc_u32 s53, s53, 0",
                "s_mul_i32 s54, s52, 7",
                "s_add_u32 s54, s54, 6",
                "s_cmp_eq_u32 s51, 6",
                "s_cselect_b32 s53, s54, s53",
                "s_add_u32 s53, s53, s50",
                "s_lshl_b32 s38, s53, 15",
                "s_add_u32 s51, s51, 2",
                "s_cmp_ge_u32 s51, 7",
                "s_cselect_b32 s54, 7, 0",
                "s_sub_u32 s51, s51, s54",
                "s_lshl_b32 s54, s54, 1",
                "s_add_u32 s50, s50, s54"]
    def dma(sl):
        r = wsoff()
        r += [f"s_add_u32 m0, s40, {sl*SL}", "s_nop 0", f"buffer_load_dwordx4 v{VW}, s[16:19], s38 offen lds"]
        if kind != 'k6': r += ["s_add_u32 s38, s38, 131072"]
        g = [r]
        if XTRA:
            g.append([f"s_mul_i32 s3, s43, {sl}", "s_add_u32 m0, s42, s3", "s_nop 0",
                      f"buffer_load_dwordx4 v{VX}, s[20:23], s39 offen lds", "s_add_u32 s39, s39, 4096"])
        return g
    def aload(n):
        return [[f"buffer_load_dwordx4 {vr(abuf(n,0),4)}, v{VA}, s[12:15], s37 offen"],
                [f"buffer_load_dwordx4 {vr(abuf(n,1),4)}, v{VA2}, s[12:15], s37 offen", "s_add_u32 s37, s37, 262144"]]
    NV = len(dma(0)) + 2
    A(f"v_and_b32 v2, 15, v{VL}")
    A(f"v_lshrrev_b32 v3, 4, v{VL}")
    if kind == 'k2':
        A(f"v_lshlrev_b32 v4, 4, v{VL}")
        A("s_lshl_b32 s3, s32, 10")
        A(f"s_add_u32 m0, s3, {TBL}")
        A(f"s_add_u32 s3, s3, {WS['MOD']}")
        A("buffer_load_dwordx4 v4, s[24:27], s3 offen lds")
    def prestage(t):
        for g in dma((t + R) % R): A(g)
        if t + 7 >= 0:
            for g in aload((t + 7) % NB): A(g)
    prestage(-8); prestage(-7)
    A("s_xor_b32 s55, s33, s41")
    A("s_lshl_b32 s55, s55, 4")
    A("s_lshl_b32 s3, s34, 5")
    A("s_add_u32 s55, s55, s3")
    A("s_lshl_b32 s3, s35, 7")
    A("s_add_u32 s55, s55, s3")
    nep = 0
    if kind in ('k4', 'k6'):
        A("v_add_u32 v4, s55, v2")
        A("v_lshlrev_b32 v4, 11, v4")
        A("v_lshl_add_u32 v4, v3, 3, v4")
        A("s_lshl_b32 s3, s36, 7")
        A(f"v_add_u32 v{EPO}, s3, v4")
        A("v_lshlrev_b32 v5, 4, v3")
        A("s_lshl_b32 s3, s36, 8")
        A(f"v_add_u32 v{EPM}, s3, v5")
        if kind == 'k4':
            for b in range(4):
                A(f"buffer_load_dwordx2 {vr(XR+2*b,2)}, v{EPO}, s[28:31], 0 offen offset:{32*b}")
            A(f"s_mov_b32 s3, {WS['MOD'] + 2*4096}")
            A(f"s_mov_b32 s10, {WS['MOD'] + 4*4096}")
            for b in range(4):
                A(f"buffer_load_dwordx4 {vr(GA+4*b,4)}, v{EPM}, s[24:27], s3 offen offset:{64*b}")
                A(f"buffer_load_dwordx4 {vr(A2+4*b,4)}, v{EPM}, s[24:27], s10 offen offset:{64*b}")
            nep = 12
        else:
            A(f"s_mov_b32 s3, {WS['X2']}")
            for b in range(4):
                A(f"buffer_load_dwordx2 {vr(XR+2*b,2)}, v{EPO}, s[24:27], s3 offen offset:{32*b}")
            A(f"s_mov_b32 s3, {WS['MOD'] + 5*4096}")
            for b in range(4):
                A(f"buffer_load_dwordx4 {vr(GA+4*b,4)}, v{EPM}, s[24:27], s3 offen offset:{64*b}")
            nep = 8
    for t in range(-6, 0): prestage(t)
    A(f"v_and_b32 v2, 15, v{VL}")
    A(f"v_lshrrev_b32 v3, 4, v{VL}")
    A(f"v_bfe_u32 v4, v{VL}, 2, 2")
    if NAT:
        A("v_lshl_add_u32 v5, v3, 3, v4"); RDOFF = 4 * 128
    else:
        A("v_lshl_add_u32 v5, v3, 2, v4"); RDOFF = 16 * 128
    sigma(6, 5, 7)
    A("s_lshl_b32 s3, s33, 5")
    A("v_add_u32 v5, s3, v5")
    A(f"v_and_b32 v7, 3, v{VL}")
    A("v_lshlrev_b32 v7, 3, v7")
    A("v_lshl_add_u32 v7, v5, 7, v7")
    for b in range(4):
        A(f"v_xor_b32 v8, {b}, v6")
        A(f"v_lshl_add_u32 v{VT[b]}, v8, 5, v7")
    if XTRA:
        A("v_bfe_u32 v6, v5, 3, 1")
        A(f"v_and_b32 v7, 3, v{VL}")
        A("v_lshlrev_b32 v7, 3, v7")
        A("v_lshl_add_u32 v7, v5, 6, v7")
        A(f"v_add_u32 v7, {XBASE}, v7")
        for b in range(2):
            A(f"v_xor_b32 v8, {b}, v6")
            A(f"v_lshl_add_u32 v{VTX[b]}, v8, 5, v7")
        A("v_lshlrev_b32 v8, 5, v3")
        A("s_lshl_b32 s3, s33, 7")
        A(f"s_add_u32 s3, s3, {TBL}")
        A(f"v_add_u32 v{VTB}, s3, v8")
    for r in range(32): A(f"v_mov_b32 v{ACC+r}, 0")
    if XTRA:
        for r in range(8): A(f"v_mov_b32 v{XACC+r}, 0")
    def freads(sl, p):
        r = []
        for b in range(4):
            for rd in range(2):
                r.append(f"ds_read_b64_tr_b16 {vr(fw(p,b)+2*rd,2)}, v{VT[b]} offset:{sl*SL + rd*RDOFF}")
        if XTRA:
            for b in range(2):
                for rd in range(2):
                    r.append(f"ds_read_b64_tr_b16 {vr(fx(p,b)+2*rd,2)}, v{VTX[b]} offset:{sl*4096 + rd*256}")
        return r
    def tblreads(j):
        return [f"ds_read_b128 {vr(TSA,4)}, v{VTB} offset:{j*256}",
                f"ds_read_b128 {vr(TSA+4,4)}, v{VTB} offset:{j*256+16}",
                f"ds_read_b128 {vr(TA1,4)}, v{VTB} offset:{j*256+4096}",
                f"ds_read_b128 {vr(TA1+4,4)}, v{VTB} offset:{j*256+4096+16}"]
    def transform(n):
        r = []
        for i in range(2):
            a = abuf(n, i)
            for d in range(4):
                r.append(f"v_lshlrev_b32 v{TU+2*d}, 16, v{a+d}")
                r.append(f"v_and_b32 v{TU+2*d+1}, 0xffff0000, v{a+d}")
            for e in range(8):
                r.append(f"v_fma_f32 v{TU+e}, v{TU+e}, v{TA1+e}, v{TSA+e}")
            for d in range(4):
                r.append(f"v_cvt_pk_bf16_f32 v{a+d}, v{TU+2*d}, v{TU+2*d+1}")
        return r
    first_after = 7 * NV + nep
    A(f"s_waitcnt vmcnt({min(first_after, 63)})")
    A("s_barrier")
    stamp("bar0")
    A(freads(0, 0))
    WAITN = 6 * NV
    if XTRA:
        WAITN = 5 * NV
        A(tblreads(0))
        A(f"s_waitcnt vmcnt({6*NV}) lgkmcnt(0)")
        A(transform(0))
        A(tblreads(1))
    A(f"s_mov_b32 s48, {NST // 8}")
    stamp("loopstart")
    if dbg: A("s_waitcnt lgkmcnt(0)")
    A(f"{name}_loop:")
    for j in range(8):
        p = j % 2
        A(f"s_waitcnt vmcnt({WAITN}) lgkmcnt(0)")
        A("s_barrier")
        mf = [mfma16(acc(i, b), fw(p, b), abuf(j, i), acc(i, b)) for b in range(4) for i in range(2)]
        if XTRA:
            mf += [mfma16(XACC + 4 * b, fx(p, b), abuf(j, 0), XACC + 4 * b) for b in range(2)]
        fill = freads((j + 1) % R, 1 - p)
        vm = dma(j % R) + aload((j + 7) % NB)
        if XTRA:
            tr = transform((j + 1) % NB)
            seq = interleave(mf, fill + vm, 0, 5)
            seq2 = []
            k = 0; cnt = 0; nm = len(mf)
            for ins in seq:
                seq2.append(ins)
                if ins.startswith("v_mfma"):
                    cnt += 1
                    hi = round(cnt * len(tr) / nm)
                    seq2.extend(tr[k:hi]); k = hi
            nxt = (j + 2) % 8
            if j == 6: seq2.append(f"v_add_u32 v{VTB}, 2048, v{VTB}")
            seq2.extend(tblreads(nxt))
            A(seq2)
        else:
            A(interleave(mf, fill + vm, 0, 7))
    A("s_sub_u32 s48, s48, 1")
    A("s_cmp_lg_u32 s48, 0")
    A(f"s_cbranch_scc1 {name}_loop")
    stamp("loopend")
    A("s_waitcnt vmcnt(0) lgkmcnt(0)")
    A("s_barrier")
    stamp("epibar")
    P = 128
    XP = 144
    A(f"v_lshlrev_b32 v5, 4, v{VL}")
    A("s_lshl_b32 s3, s34, 1")
    A("s_add_u32 s10, s3, s33")
    A("s_lshl_b32 s10, s10, 12")
    A("s_xor_b32 s11, s10, 4096")
    A("v_add_u32 v6, s11, v5")
    A("v_add_u32 v7, s10, v5")
    A("s_cmp_eq_u32 s33, 0")
    A(f"s_cbranch_scc0 {name}_e1")
    for b in range(4): A(f"ds_write_b128 v6, {vr(acc(1,b),4)} offset:{b*1024}")
    A(f"s_branch {name}_e2")
    A(f"{name}_e1:")
    for b in range(4): A(f"ds_write_b128 v6, {vr(acc(0,b),4)} offset:{b*1024}")
    if XTRA:
        A("s_lshl_b32 s3, s34, 11")
        A(f"s_add_u32 s3, s3, 32768")
        A("v_add_u32 v8, s3, v5")
        for b in range(2): A(f"ds_write_b128 v8, {vr(XACC+4*b,4)} offset:{b*1024}")
    A(f"{name}_e2:")
    A("s_waitcnt lgkmcnt(0)")
    A("s_barrier")
    for b in range(4): A(f"ds_read_b128 {vr(P+4*b,4)}, v7 offset:{b*1024}")
    if XTRA:
        A("s_lshl_b32 s3, s34, 11")
        A(f"s_add_u32 s3, s3, 32768")
        A("v_add_u32 v8, s3, v5")
        for b in range(2): A(f"ds_read_b128 {vr(XP+4*b,4)}, v8 offset:{b*1024}")
    A("s_waitcnt lgkmcnt(0)")
    A("s_cmp_eq_u32 s33, 0")
    A(f"s_cbranch_scc0 {name}_e3")
    for b in range(4):
        for r in range(4): A(f"v_add_f32 v{P+4*b+r}, v{P+4*b+r}, v{acc(0,b)+r}")
    A(f"s_branch {name}_e4")
    A(f"{name}_e3:")
    for b in range(4):
        for r in range(4): A(f"v_add_f32 v{P+4*b+r}, v{P+4*b+r}, v{acc(1,b)+r}")
    A(f"{name}_e4:")
    A(f"v_and_b32 v2, 15, v{VL}")
    A(f"v_lshrrev_b32 v3, 4, v{VL}")
    if kind == 'k2':
        A(f"s_mov_b32 s3, {f32hex(QSCALE)}")
        for r in range(16): A(f"v_mul_f32 v{P+r}, s3, v{P+r}")
        A("v_add_u32 v4, s55, v2")
        A("v_lshrrev_b32 v5, 5, v4")
        A("v_lshlrev_b32 v5, 11, v5")
        A("v_and_b32 v6, 31, v4")
        A("v_and_b32 v7, 1, v3")
        A("v_lshl_or_b32 v6, v7, 5, v6")
        A("v_lshl_add_u32 v5, v6, 4, v5")
        A("v_lshrrev_b32 v7, 1, v3")
        A("v_lshl_add_u32 v5, v7, 10, v5")
        A("s_lshl_b32 s3, s36, 18")
        A(f"s_add_u32 s3, s3, {WS['QF']}")
        A("s_add_u32 s10, s3, 131072")
        for u in range(2):
            t = 8 + 4 * u
            A(f"v_cvt_pk_bf16_f32 v{t}, v{P+8*u}, v{P+8*u+1}")
            A(f"v_cvt_pk_bf16_f32 v{t+1}, v{P+8*u+2}, v{P+8*u+3}")
            A(f"v_cvt_pk_bf16_f32 v{t+2}, v{P+8*u+4}, v{P+8*u+5}")
            A(f"v_cvt_pk_bf16_f32 v{t+3}, v{P+8*u+6}, v{P+8*u+7}")
            A(f"buffer_store_dwordx4 {vr(t,4)}, v5, s[24:27], s{3 if u == 0 else 10} offen")
        A("s_lshr_b32 s3, s36, 2")
        A("s_cmp_eq_u32 s3, s34")
        A(f"s_cbranch_scc0 {name}_fin")
        A("s_cmp_eq_u32 s33, 0")
        A(f"s_cbranch_scc0 {name}_fin")
        for r in range(8): A(f"v_add_f32 v{XP+r}, v{XP+r}, v{XACC+r}")
        A(f"v_cvt_pk_bf16_f32 v16, v{XP}, v{XP+1}")
        A(f"v_cvt_pk_bf16_f32 v17, v{XP+2}, v{XP+3}")
        A(f"v_cvt_pk_bf16_f32 v18, v{XP+4}, v{XP+5}")
        A(f"v_cvt_pk_bf16_f32 v19, v{XP+6}, v{XP+7}")
        A("s_lshr_b32 s3, s36, 1")
        A("s_lshl_b32 s3, s3, 4")
        A("s_lshl_b32 s10, s35, 7")
        A("s_add_u32 s3, s3, s10")
        A("v_add_u32 v4, s3, v2")
        A("s_cmp_eq_u32 s56, 1")
        A(f"s_cbranch_scc1 {name}_vst")
        A("v_lshrrev_b32 v5, 5, v4")
        A("v_lshlrev_b32 v5, 11, v5")
        A("v_and_b32 v6, 31, v4")
        A("v_and_b32 v7, 1, v3")
        A("v_lshl_or_b32 v6, v7, 5, v6")
        A("v_lshl_add_u32 v5, v6, 4, v5")
        A("v_lshrrev_b32 v7, 1, v3")
        A("v_lshl_add_u32 v5, v7, 10, v5")
        A(f"s_mov_b32 s3, {WS['KF']}")
        A("buffer_store_dwordx4 v[16:19], v5, s[24:27], s3 offen")
        A("v_mov_b32 v20, 0")
        for d in range(4):
            A(f"v_lshlrev_b32 v21, 16, v{16+d}")
            A(f"v_and_b32 v22, 0xffff0000, v{16+d}")
            A("v_fmac_f32 v20, v21, v21")
            A("v_fmac_f32 v20, v22, v22")
        for perm in ("v_permlane16_swap_b32", "v_permlane32_swap_b32"):
            A("v_mov_b32 v21, v20")
            A("s_nop 1")
            A(f"{perm} v20, v21")
            A("s_nop 1")
            A("v_add_f32 v20, v20, v21")
        A("s_nop 1")
        for ror in (8, 4, 2, 1):
            A(f"v_max_f32_dpp v20, v20, v20 row_ror:{ror} row_mask:0xf bank_mask:0xf")
            A("s_nop 1")
        A("s_lshl_b32 s3, s35, 3")
        A("s_lshr_b32 s10, s36, 1")
        A("s_add_u32 s3, s3, s10")
        A("s_lshl_b32 s3, s3, 2")
        A(f"s_add_u32 s3, s3, {WS['KMAX']}")
        A("v_mov_b32 v21, 0")
        A("buffer_store_dword v20, v21, s[24:27], s3 offen")
        A(f"s_branch {name}_fin")
        A(f"{name}_vst:")
        A("v_lshlrev_b32 v5, 6, v4")
        A("v_lshl_add_u32 v5, v3, 4, v5")
        A(f"s_mov_b32 s3, {WS['VF']}")
        A("buffer_store_dwordx4 v[16:19], v5, s[24:27], s3 offen")
    elif kind == 'k4':
        A("v_mov_b32 v20, 0"); A("v_mov_b32 v21, 0")
        for b in range(4):
            for h in range(2):
                A(f"v_lshlrev_b32 v4, 16, v{XR+2*b+h}")
                A(f"v_and_b32 v5, 0xffff0000, v{XR+2*b+h}")
                r0 = P + 4*b + 2*h
                A(f"v_fma_f32 v{r0}, v{GA+4*b+2*h}, v{r0}, v4")
                A(f"v_fma_f32 v{r0+1}, v{GA+4*b+2*h+1}, v{r0+1}, v5")
                A(f"v_add_f32 v20, v20, v{r0}")
                A(f"v_fmac_f32 v21, v{r0}, v{r0}")
                A(f"v_add_f32 v20, v20, v{r0+1}")
                A(f"v_fmac_f32 v21, v{r0+1}, v{r0+1}")
            t = 8 + 2 * (b % 2)
            A(f"v_cvt_pk_bf16_f32 v{t}, v{P+4*b}, v{P+4*b+1}")
            A(f"v_cvt_pk_bf16_f32 v{t+1}, v{P+4*b+2}, v{P+4*b+3}")
            A(f"s_mov_b32 s3, {WS['X2']}")
            A(f"buffer_store_dwordx2 {vr(t,2)}, v{EPO}, s[24:27], s3 offen offset:{32*b}")
            for r in range(4): A(f"v_mul_f32 v{P+4*b+r}, v{P+4*b+r}, v{A2+4*b+r}")
        A(f"v_lshlrev_b32 v5, 4, v{VL}")
        A("s_lshl_b32 s3, s55, 6")
        A("v_add_u32 v5, s3, v5")
        A("s_lshl_b32 s3, s36, 18")
        A(f"s_add_u32 s3, s3, {WS['YF']}")
        A("s_add_u32 s10, s3, 131072")
        for u in range(2):
            t = 24 + 4 * u
            A(f"v_cvt_pk_bf16_f32 v{t}, v{P+8*u}, v{P+8*u+1}")
            A(f"v_cvt_pk_bf16_f32 v{t+1}, v{P+8*u+2}, v{P+8*u+3}")
            A(f"v_cvt_pk_bf16_f32 v{t+2}, v{P+8*u+4}, v{P+8*u+5}")
            A(f"v_cvt_pk_bf16_f32 v{t+3}, v{P+8*u+6}, v{P+8*u+7}")
            A(f"buffer_store_dwordx4 {vr(t,4)}, v5, s[24:27], s{3 if u == 0 else 10} offen")
        for perm in ("v_permlane16_swap_b32", "v_permlane32_swap_b32"):
            A("v_mov_b32 v22, v20"); A("v_mov_b32 v23, v21")
            A("s_nop 1")
            A(f"{perm} v20, v22"); A(f"{perm} v21, v23")
            A("s_nop 1")
            A("v_add_f32 v20, v20, v22"); A("v_add_f32 v21, v21, v23")
        A("v_cmp_eq_u32 vcc, 0, v3")
        A("v_add_u32 v4, s55, v2")
        A("v_lshlrev_b32 v4, 3, v4")
        A("v_cndmask_b32 v20, v21, v20, vcc")
        A("v_lshl_add_u32 v4, v3, 2, v4")
        A("v_cmp_gt_u32 vcc, 2, v3")
        A(f"s_mov_b32 s3, {WS['STAT']}")
        A("s_and_saveexec_b64 s[10:11], vcc")
        A("buffer_atomic_add_f32 v20, v4, s[24:27], s3 offen")
        A("s_mov_b64 exec, s[10:11]")
    else:
        for b in range(4):
            for h in range(2):
                A(f"v_lshlrev_b32 v4, 16, v{XR+2*b+h}")
                A(f"v_and_b32 v5, 0xffff0000, v{XR+2*b+h}")
                r0 = P + 4*b + 2*h
                A(f"v_fma_f32 v{r0}, v{GA+4*b+2*h}, v{r0}, v4")
                A(f"v_fma_f32 v{r0+1}, v{GA+4*b+2*h+1}, v{r0+1}, v5")
            t = 8 + 2 * (b % 2)
            A(f"v_cvt_pk_bf16_f32 v{t}, v{P+4*b}, v{P+4*b+1}")
            A(f"v_cvt_pk_bf16_f32 v{t+1}, v{P+4*b+2}, v{P+4*b+3}")
            A(f"buffer_store_dwordx2 {vr(t,2)}, v{EPO}, s[28:31], 0 offen offset:{32*b}")
    A(f"{name}_fin:")
    if dbg:
        stamp("stored")
        A("s_waitcnt vmcnt(0)")
        stamp("end")
        A("s_memrealtime s[98:99]")
        A("s_waitcnt lgkmcnt(0)")
        A("s_lshl_b32 s3, s2, 3")
        A("s_add_u32 s3, s3, s32")
        A("s_lshl_b32 s3, s3, 6")
        A(f"s_add_u32 s3, s3, {WS['DBG'] + dbg * 131072}")
        A("v_mov_b32 v4, 0")
        for n in range(len(stamps)):
            if n > 0: A(f"s_sub_u32 s{60+2*n}, s{60+2*n}, s60")
            A(f"v_mov_b32 v{16+n}, s{60+2*n}")
        A("v_mov_b32 v28, s96")
        A("v_mov_b32 v29, s98")
        for q in range(4):
            A(f"buffer_store_dwordx4 v[{16+4*q}:{19+4*q}], v4, s[24:27], s3 offen offset:{16*q}")
    A(f"{name}_end:")
    A("s_endpgm")
    kernel_end(A, name, 256)
    return dict(name=name, grid=256, block=512, lds=max(LDS, 40960), stamps=stamps)
```

```python
import sys
from asmlib import *
from k1 import gen_k1
from s2 import gen_s2
from k3 import gen_k3
from k5 import gen_k5

HDR = open("adaLN_cond__grouped_kv_mqa__glu_gated_reglu__prompt.s.ref").read().split("\n")

def build(dbg=False, force_fallback=False):
    A = Asm()
    infos = []
    infos.append(gen_k1(A, "k1_kernel"))
    infos.append(gen_s2(A, "k2", "k2_kernel", dbg=1 if dbg else False))
    infos.append(gen_k3(A, "k3_kernel", dbg=2 if dbg else False, force_fallback=force_fallback))
    infos.append(gen_s2(A, "k4", "k4_kernel", dbg=3 if dbg else False))
    infos.append(gen_k5(A, "k5_kernel", dbg=4 if dbg else False))
    infos.append(gen_s2(A, "k6", "k6_kernel", dbg=5 if dbg else False))
    head = [l for l in HDR if l.startswith(";") and "@launch" not in l and "Override launch" not in l and "grid=ceil" not in l]
    for i in infos:
        head.append(f"; @launch kernel={i['name']} grid=({i['grid']},1,1) block=({i['block']},1,1) lds={i['lds']}")
    txt = "\n".join(head) + '\n.amdgcn_target "amdgcn-amd-amdhsa--gfx950"\n' + A.text()
    return txt, infos

if __name__ == "__main__":
    dbg = "dbg" in sys.argv
    txt, infos = build(dbg, "ff" in sys.argv)
    out = "full_dbg.s" if (dbg or "ff" in sys.argv) else "adaLN_cond__grouped_kv_mqa__glu_gated_reglu__prompt.s"
    open(out, "w").write(txt)
    import json
    json.dump(infos, open("infos.json", "w"))
    print(out, len(txt))
```
